```python
import torch

def _softmax(x, axis=-1):
    return torch.softmax(x, dim=axis)

def _gelu(x):
    return torch.nn.functional.gelu(x, approximate='tanh')

def _silu(x):
    return torch.nn.functional.silu(x)

def _sigmoid(x):
    return torch.sigmoid(x)

def _layernorm(x, axis=-1, eps=1e-05):
    m = x.mean(dim=axis, keepdim=True)
    v = x.var(dim=axis, keepdim=True, unbiased=False)
    return (x - m) / torch.sqrt(v + eps)

def _scatter_add(tgt, idx, src, axis=0):
    return tgt.clone().index_add_(axis, idx, src)

def _segment_sum(src, seg, n):
    out = torch.zeros((n,) + src.shape[1:], dtype=src.dtype)
    return out.index_add_(0, seg, src)

def _pad(x, pw):
    flat = tuple((v for pair in reversed(pw) for v in pair))
    return torch.nn.functional.pad(x, flat)
kernel_name = 'parallel_sum__memory_aug_recurrent_mem_tr__glu_gated_bilinear__prompt'

def setup_inputs():

    _w = lambda a: (lambda t: t.to(torch.bfloat16) if t.is_floating_point() else t)(torch.as_tensor(a))

    def _A_setup():
        B, S, Dm = (1, 2048, 512)
        H, Dh = (32, 128)
        M, seg = (8, 32)
        seg = min(seg, S)
        S = S // seg * seg
        return {'x': _w((lambda *s: torch.randn(*s, dtype=torch.bfloat16) * 0.05)(B, S, Dm)), 'mem0': _w((lambda *s: torch.randn(*s, dtype=torch.bfloat16) * 0.2)(B, M, Dm)), 'Wq': _w((lambda *s: torch.randn(*s, dtype=torch.bfloat16) * 1.6)(Dm, H, Dh) * Dm ** (-0.5)), 'Wk': _w((lambda *s: torch.randn(*s, dtype=torch.bfloat16) * 1.6)(Dm, H, Dh) * Dm ** (-0.5)), 'Wv': _w((lambda *s: torch.randn(*s, dtype=torch.bfloat16) * 0.2)(Dm, H, Dh) * Dm ** (-0.5)), 'Wo': _w((lambda *s: torch.randn(*s, dtype=torch.bfloat16) * 0.2)(H, Dh, Dm) * (H * Dh) ** (-0.5)), 'seg_len': seg}
    _A_in = _A_setup()

    def _B_setup():
        B, S, D, F = (1, 2048, 512, 1376)
        return {'x': _w((lambda *s: torch.randn(*s, dtype=torch.bfloat16) * 0.05)(B, S, D)), 'w_gate': _w((lambda *s: torch.randn(*s, dtype=torch.bfloat16) * 0.2)(D, F) * D ** (-0.5)), 'w_up': _w((lambda *s: torch.randn(*s, dtype=torch.bfloat16) * 0.2)(D, F) * D ** (-0.5)), 'w_down': _w((lambda *s: torch.randn(*s, dtype=torch.bfloat16) * 0.2)(F, D) * F ** (-0.5))}
    _B_in = _B_setup()
    return {'A_x': _A_in['x'], 'A_mem0': _A_in['mem0'], 'A_Wq': _A_in['Wq'], 'A_Wk': _A_in['Wk'], 'A_Wv': _A_in['Wv'], 'A_Wo': _A_in['Wo'], 'A_seg_len': _A_in['seg_len'], 'B_x': _B_in['x'], 'B_w_gate': _B_in['w_gate'], 'B_w_up': _B_in['w_up'], 'B_w_down': _B_in['w_down']}

def reference(A_x, A_mem0, A_Wq, A_Wk, A_Wv, A_Wo, A_seg_len, B_x, B_w_gate, B_w_up, B_w_down):

    def _A_ref(x, mem0, Wq, Wk, Wv, Wo, seg_len):
        B, S, Dm = x.shape
        H, Dh = (Wq.shape[1], Wq.shape[2])
        M = mem0.shape[1]
        scale = Dh ** (-0.5)
        n_seg = S // seg_len
        L = M + seg_len
        idx = torch.arange(L)
        mask = (idx[:, None] < M) | (idx[:, None] >= idx[None, :])
        mem = mem0
        outs = []
        for s in range(n_seg):
            xs = x[:, s * seg_len:(s + 1) * seg_len, :].clone()
            h = torch.concatenate([mem, xs], axis=1)
            q = torch.einsum('btd,dhe->bhte', h, Wq)
            k = torch.einsum('btd,dhe->bhte', h, Wk)
            v = torch.einsum('btd,dhe->bhte', h, Wv)
            scores = torch.einsum('bhqe,bhke->bhqk', q, k) * scale
            scores = torch.where(mask[None, None], scores, -1000000000.0)
            p = _softmax(scores, axis=-1)
            o = torch.einsum('bhqk,bhke->bhqe', p, v)
            o = torch.einsum('bhte,hed->btd', o, Wo)
            mem = o[:, :M, :].clone()
            outs.append(o[:, M:, :])
        return torch.concatenate(outs, axis=1)

    def _B_ref(x, w_gate, w_up, w_down):
        g = torch.einsum('bsd,df->bsf', x, w_gate)
        u = torch.einsum('bsd,df->bsf', x, w_up)
        h = g * u
        return torch.einsum('bsf,fd->bsd', h, w_down)
    x = A_x
    xn = _layernorm(x, axis=-1)
    return x + _A_ref(xn, A_mem0, A_Wq, A_Wk, A_Wv, A_Wo, A_seg_len) + _B_ref(xn, B_w_gate, B_w_up, B_w_down)
```

```python
import re

REG_RE = re.compile(r'^(-|\|)?([vas])(\d+)\|?$')
RNG_RE = re.compile(r'^(-|\|)?([vas])\[(\d+):(\d+)\]\|?$')


def regs_of(tok):
    tok = tok.strip()
    m = REG_RE.match(tok)
    if m:
        return {(m.group(2), int(m.group(3)))}
    m = RNG_RE.match(tok)
    if m:
        return {(m.group(2), i) for i in range(int(m.group(3)), int(m.group(4)) + 1)}
    if tok == 'vcc':
        return {('s', 'vcc')}
    if tok == 'exec':
        return {('s', 'exec')}
    if tok == 'm0':
        return {('s', 'm0')}
    return set()


TRANS = ('v_exp_f32', 'v_log_f32', 'v_rcp_f32', 'v_rsq_f32', 'v_sqrt_f32', 'v_sin_f32', 'v_cos_f32',
         'v_rcp_iflag_f32')
NO_DST_S = ('s_cmp', 's_waitcnt', 's_branch', 's_cbranch', 's_nop', 's_barrier', 's_sleep', 's_setprio',
            's_endpgm', 's_bitcmp', 's_sethalt', 's_setreg')


class Ins:
    __slots__ = ('text', 'op', 'ops', 'rd', 'wr', 'kind', 'dpp', 'label', 'target', 'lds', 'passes', 'srcc',
                 'ab', 'nops', 'wide_store', 'sdata', 'states', 'opsel')

    def __init__(self, text):
        self.text = text
        self.label = None
        self.target = None
        self.kind = None
        self.rd = set()
        self.wr = set()
        self.dpp = False
        self.lds = False
        self.passes = 0
        self.srcc = set()
        self.ab = set()
        self.wide_store = False
        self.sdata = set()
        self.states = 1
        self.opsel = False
        t = text.split(';')[0].strip()
        if not t:
            self.kind = 'empty'
            self.states = 0
            return
        if t.endswith(':'):
            self.kind = 'label'
            self.label = t[:-1]
            self.states = 0
            return
        if t.startswith('.'):
            self.kind = 'directive'
            self.states = 0
            return
        parts = t.split(None, 1)
        op = parts[0]
        self.op = op
        rest = parts[1] if len(parts) > 1 else ''
        ops = []
        cur = ''
        depth = 0
        for ch in rest:
            if ch in '[(':
                depth += 1
            if ch in '])':
                depth -= 1
            if ch == ',' and depth == 0:
                ops.append(cur.strip())
                cur = ''
            else:
                cur += ch
        if cur.strip():
            ops.append(cur.strip())
        mods = ''
        if ops:
            sp = ops[-1].split(None, 1)
            if len(sp) > 1:
                ops[-1] = sp[0]
                mods = sp[1]
        self.ops = ops
        R = [regs_of(o) for o in ops]
        allr = set().union(*R) if R else set()
        if op.startswith('v_mfma') or op.startswith('v_smfmac'):
            self.kind = 'mfma'
            self.passes = 8 if '32x32' in op else 4
            self.wr = set(R[0])
            if op.startswith('v_smfmac'):
                self.srcc = set(R[0])
                self.ab = R[1] | R[2] | R[3]
            else:
                self.srcc = set(R[3])
                self.ab = R[1] | R[2]
            self.rd = self.srcc | self.ab
        elif op.startswith('v_'):
            self.kind = 'valu'
            self.dpp = ('row_' in mods) or ('quad_perm' in mods) or ('dpp' in op) or ('wave_' in mods)
            self.opsel = ('op_sel' in mods and not op.startswith('v_pk_')) or 'sdwa' in op or 'dst_sel' in mods
            if op.startswith('v_permlane') and 'swap' in op:
                self.wr = R[0] | R[1]
                self.rd = R[0] | R[1]
            elif op.startswith('v_cmp'):
                self.wr = set(R[0])
                self.rd = set().union(*R[1:])
                if op.startswith('v_cmpx'):
                    self.wr |= {('s', 'exec')}
            elif '_co_' in op:
                self.wr = R[0] | R[1]
                self.rd = set().union(*R[2:])
            else:
                self.wr = set(R[0])
                self.rd = set().union(*R[1:]) if len(R) > 1 else set()
                if op.startswith(('v_fmac', 'v_mac', 'v_pk_fmac', 'v_dot2c', 'v_writelane')) or self.dpp or self.opsel:
                    self.rd |= R[0]
                if op.startswith('v_cndmask') and len(ops) == 3:
                    self.rd |= {('s', 'vcc')}
        elif op.startswith('ds_'):
            self.kind = 'ds'
            if op.startswith('ds_read') or op.startswith('ds_bpermute') or op.startswith('ds_permute') or op.startswith('ds_swizzle'):
                self.wr = set(R[0])
                self.rd = set().union(*R[1:])
            else:
                self.rd = allr
        elif op.startswith(('buffer_', 'global_')):
            self.kind = 'vmem'
            islds = ' lds' in (' ' + mods) or '_lds_' in op
            self.lds = islds
            if 'load' in op and not islds:
                self.wr = set(R[0])
                self.rd = set().union(*R[1:])
            elif 'atomic' in op:
                self.rd = allr
                if 'sc0' in mods:
                    self.wr = set(R[0])
            else:
                self.rd = allr
                if 'store' in op and ('x3' in op or 'x4' in op):
                    self.wide_store = True
                    self.sdata = R[0] if op.startswith('buffer_') else R[1]
            if islds:
                self.rd |= {('s', 'm0')}
        elif op.startswith('s_'):
            self.kind = 'salu'
            if op in ('s_nop',):
                self.states = int(ops[0], 0) + 1
            if op.startswith(('s_branch', 's_cbranch')):
                self.target = ops[0]
                if 'vcc' in op:
                    self.rd = {('s', 'vcc')}
                if 'exec' in op:
                    self.rd = {('s', 'exec')}
            elif op.startswith(('s_load', 's_memtime', 's_memrealtime')):
                self.kind = 'smem'
                self.wr = set(R[0])
                self.rd = set().union(*R[1:]) if len(R) > 1 else set()
            elif op.startswith(NO_DST_S):
                self.rd = allr
            else:
                self.wr = set(R[0]) if R else set()
                self.rd = set().union(*R[1:]) if len(R) > 1 else set()
                if 'saveexec' in op:
                    self.wr |= {('s', 'exec')}
                    self.rd |= {('s', 'exec')}
        else:
            raise ValueError('unknown instr: ' + text)


def is_vec(r):
    return r[0] in 'va'


def need_states(p, c):
    n = 0
    if p.kind == 'valu':
        pv = {r for r in p.wr if is_vec(r)}
        ps = {r for r in p.wr if not is_vec(r)}
        if c.kind == 'mfma' and pv & c.rd:
            n = max(n, 2)
        if c.kind == 'valu':
            if c.dpp and pv & c.rd:
                n = max(n, 2)
            if c.op.startswith('v_permlane') and pv & c.rd:
                n = max(n, 2)
            if c.op.startswith(('v_readfirstlane', 'v_readlane')) and pv & c.rd:
                n = max(n, 1)
            if p.op.startswith(TRANS) and pv & c.rd:
                n = max(n, 1)
            if p.opsel and pv & (c.rd | c.wr):
                n = max(n, 1)
            if ps & c.rd:
                n = max(n, 4 if c.op.startswith(('v_readlane', 'v_writelane')) else 2)
            if ('s', 'exec') in ps:
                n = max(n, 5)
        if c.kind == 'vmem' and ps & c.rd:
            n = max(n, 5)
        if c.kind == 'mfma' and ('s', 'exec') in ps:
            n = max(n, 4)
        if c.kind == 'salu' and ps & c.rd and c.target is not None:
            n = max(n, 5)
    if p.kind == 'salu':
        if ('s', 'm0') in p.wr and c.kind == 'vmem' and c.lds:
            n = max(n, 1)
    if p.kind == 'vmem' and p.wide_store:
        if c.kind == 'valu' and p.sdata & c.wr:
            n = max(n, 2)
        elif c.kind in ('ds', 'vmem', 'mfma') and p.sdata & c.wr:
            n = max(n, 2)
    if p.kind == 'mfma':
        big = p.passes == 8
        if c.kind == 'mfma':
            if p.wr & c.srcc:
                if not (p.wr == c.srcc and p.passes == c.passes):
                    n = max(n, 10 if big else 6)
            if p.wr & c.ab:
                n = max(n, 12 if big else 8)
            if p.wr & c.wr and not (p.wr & c.srcc):
                n = max(n, 12 if big else 8)
        elif c.kind in ('valu', 'vmem', 'ds'):
            if p.wr & (c.rd | c.wr):
                n = max(n, 12 if big else 8)
            if c.kind == 'valu' and p.srcc & c.wr:
                n = max(n, 7 if big else 3)
    return n


MAXW = 12


class Asm:
    def __init__(self):
        self.lines = []
        self.uid = 0

    def __call__(self, s):
        for l in s.split('\n'):
            l = l.strip()
            if l:
                self.lines.append(l)

    def label(self, name):
        self.lines.append(name + ':')

    def newlabel(self, base):
        self.uid += 1
        return f'{base}_{self.uid}'

    def finalize(self, check=True):
        ins = [Ins(l) for l in self.lines]
        total = 0
        while True:
            labels = {x.label: i for i, x in enumerate(ins) if x.kind == 'label'}
            preds = {}
            for i, x in enumerate(ins):
                if x.target is not None and x.target in labels:
                    preds.setdefault(labels[x.target], []).append(i)
            inserted = False
            out = []
            for i, c in enumerate(ins):
                if c.kind in ('label', 'empty', 'directive'):
                    out.append(c)
                    continue
                need = 0
                stack = [(i - 1, 0)]
                seen = set()
                while stack:
                    j, dist = stack.pop()
                    while j >= 0 and dist < MAXW:
                        if (j, dist) in seen:
                            break
                        seen.add((j, dist))
                        p = ins[j]
                        if p.kind == 'label':
                            for b in preds.get(j, []):
                                stack.append((b, dist))
                            j -= 1
                            continue
                        if p.kind in ('empty', 'directive'):
                            j -= 1
                            continue
                        if p.kind == 'salu' and p.op in ('s_branch', 's_endpgm') and j != i and not (dist == 0 and False):
                            if (j + 1 <= i) and seen is not None and not self._arrived_by_jump(j, stack_mark=None):
                                pass
                        w = need_states(p, c)
                        if w > dist:
                            need = max(need, w - dist)
                        dist += p.states
                        j -= 1
                if need > 0:
                    nop = Ins(f's_nop {need - 1}')
                    out.append(nop)
                    inserted = True
                    total += 1
                out.append(c)
            ins = out
            if not inserted:
                break
        if check:
            check_waits(ins)
        self.nops_inserted = total
        return '\n'.join(('    ' + x.text if x.kind not in ('label', 'directive') else x.text) for x in ins)

    def _arrived_by_jump(self, j, stack_mark):
        return True


def check_waits(ins, verbose=True):
    labels = {x.label: i for i, x in enumerate(ins) if x.kind == 'label'}
    vq = []
    lq = []
    taken = set()
    i = 0
    errs = []
    steps = 0
    while i < len(ins) and steps < 2000000:
        steps += 1
        x = ins[i]
        if x.kind in ('label', 'empty', 'directive'):
            i += 1
            continue
        if x.op == 's_endpgm':
            vq, lq = [], []
            i += 1
            continue
        if x.op == 's_waitcnt':
            t = x.text
            m = re.search(r'vmcnt\((\d+)\)', t)
            if m:
                n = int(m.group(1))
                while len(vq) > n:
                    vq.pop(0)
            m = re.search(r'lgkmcnt\((\d+)\)', t)
            if m:
                n = int(m.group(1))
                if n == 0:
                    lq = []
                else:
                    ds = [e for e in lq if e[2] == 'ds']
                    while len(ds) > n:
                        lq.remove(ds.pop(0))
            i += 1
            continue
        touched = x.rd | x.wr
        for q, nm in ((vq, 'vmcnt'), (lq, 'lgkmcnt')):
            for e in q:
                if e[0] & touched:
                    if (e[0] & x.rd) or not (x.kind == ins[e[1]].kind):
                        errs.append(f'{nm}: [{i}] {x.text.strip()}  uses regs pending from [{e[1]}] {ins[e[1]].text.strip()}')
        if x.kind == 'vmem':
            vq.append((set(x.wr), i, 'v'))
            if len(vq) > 63:
                errs.append(f'vmcnt overflow at [{i}] {x.text.strip()}')
                vq.pop(0)
        elif x.kind == 'ds':
            lq.append((set(x.wr), i, 'ds'))
            if len(lq) > 15 + 48:
                lq.pop(0)
        elif x.kind == 'smem':
            lq.append((set(x.wr), i, 'smem'))
        if x.target is not None and x.target in labels:
            t = labels[x.target]
            if x.op == 's_branch':
                if t > i:
                    i = t
                    continue
                if i not in taken:
                    taken.add(i)
                    i = t
                    continue
                i += 1
                continue
            if t < i and i not in taken:
                taken.add(i)
                i = t
                continue
        i += 1
    seen = set()
    for e in errs:
        if e not in seen:
            seen.add(e)
            if verbose:
                print('WAITCHK', e)
    return errs
```

```python
from qa import load_xn

H_TSTRIDE = 43 * 1024


def flag_addr(a, G, base, vdst, lane_idx_vgpr=None):
    a(f's_lshl_b32 s24, s{G.S_W}, 2')
    a(f's_add_u32 s24, s24, {hex(base)}')
    if lane_idx_vgpr is None:
        a(f's_lshl_b32 s23, s{G.S_R}, 7')
        a('s_add_u32 s24, s24, s23')
        a(f'v_mov_b32 v{vdst}, s24')
    else:
        a(f'v_lshlrev_b32 v{vdst}, 7, v{lane_idx_vgpr}')
        a(f'v_add_u32 v{vdst}, s24, v{vdst}')


def role_up(a, opt, G):
    S_A, S_B, S_W, S_R = G.S_A, G.S_B, G.S_W, G.S_R
    WS = f's[{G.S_WS}:{G.S_WS+3}]'
    a.label('ROLE_UP')
    G.srd(a, S_A, G.KA_WG, 512 * 2752)
    G.srd(a, S_B, G.KA_WU, 512 * 2752)
    a('s_waitcnt lgkmcnt(0)')
    a(f's_lshl_b32 s30, s{S_R}, 7')
    G.dma_w128(a, S_A, 2752, 30, 0, 512)
    G.dma_w128(a, S_B, 2752, 30, 0x10000, 512)
    VB = 16
    G.tr_bases_128(a, VB, 0, 2)
    flag_addr(a, G, G.F_UP, 8)
    a('v_lshlrev_b32 v9, 4, v0')
    a('s_waitcnt vmcnt(0)')
    a('s_barrier')
    G.stamp(a, 2)
    a(f's_mov_b32 s31, s{S_W}')
    a('s_mov_b32 s32, 0')
    a.label('UP_LOOP')
    G.wait_ln_segment(a, 31)
    load_xn(a, G)
    a('s_waitcnt vmcnt(0)')
    frags = [[(VB + nt, ks * 4096, 2048) for nt in range(8)] for ks in range(16)]
    ACC = 64
    G.gemm_loop(a, 16, frags, 32, 4, G.Act(2, 'a', 0, 64),
                lambda mt, nt: f'v[{ACC+32*mt+4*nt}:{ACC+32*mt+4*nt+3}]', w_is_A=True)
    a(f's_mul_i32 s33, s31, {2*H_TSTRIDE}')
    a(f's_lshl_b32 s34, s{S_R}, 11')
    a('s_add_u32 s33, s33, s34')
    a(f's_add_u32 s33, s33, {hex(G.WS_H)}')
    for mt in range(2):
        for c in range(2):
            o = 48 + 4 * (mt * 2 + c)
            for p in range(4):
                g0 = ACC + 32 * mt + 8 * c + 2 * p
                u0 = g0 + 16
                a(f'v_cvt_pk_bf16_f32 v40, v{g0}, v{g0+1}')
                a(f'v_cvt_pk_bf16_f32 v41, v{u0}, v{u0+1}')
                a('v_lshlrev_b32 v42, 16, v40')
                a('v_and_b32 v43, 0xffff0000, v40')
                a('v_lshlrev_b32 v44, 16, v41')
                a('v_and_b32 v45, 0xffff0000, v41')
                a('v_pk_mul_f32 v[42:43], v[42:43], v[44:45]')
                a(f'v_cvt_pk_bf16_f32 v{o+p}, v42, v43')
            if mt == 1 and c == 0:
                a(f's_add_u32 s33, s33, {H_TSTRIDE}')
            if c == 1:
                L = a.newlabel('UPSK')
                a(f's_cmp_eq_u32 s{S_R}, 21')
                a(f's_cbranch_scc1 {L}')
                a(f'buffer_store_dwordx4 v[{o}:{o+3}], v9, {WS}, s33 offen offset:1024 sc1')
                a.label(L)
            else:
                a(f'buffer_store_dwordx4 v[{o}:{o+3}], v9, {WS}, s33 offen sc1')
    a('s_add_u32 s32, s32, 1')
    G.publish(a, 8, 32)
    a('s_add_u32 s31, s31, 4')
    a('s_cmp_lt_u32 s31, 64')
    a('s_cbranch_scc1 UP_LOOP')
    G.stamp(a, 3)
    G.dump_stamps(a)
    a('s_endpgm')


def store_part(a, G, ACC):
    WS = f's[{G.S_WS}:{G.S_WS+3}]'
    a('s_lshl_b32 s33, s38, 22')
    a('s_lshl_b32 s34, s31, 16')
    a('s_add_u32 s33, s33, s34')
    a('s_lshl_b32 s34, s39, 12')
    a('s_add_u32 s33, s33, s34')
    a(f's_add_u32 s33, s33, {hex(G.WS_PART)}')
    for mt in range(2):
        if mt:
            a('s_add_u32 s33, s33, 0x8000')
        for nt in range(4):
            r = ACC + 16 * mt + 4 * nt
            a(f'buffer_store_dwordx4 v[{r}:{r+3}], v9, {WS}, s33 offen offset:{nt*1024} sc1')


def role_dn(a, opt, G):
    S_A, S_W, S_R = G.S_A, G.S_W, G.S_R
    WS = f's[{G.S_WS}:{G.S_WS+3}]'
    a.label('ROLE_DN')
    G.srd(a, S_A, G.KA_WD, 1376 * 1024)
    a('s_waitcnt lgkmcnt(0)')
    a(f's_lshr_b32 s37, s{S_R}, 3')
    a(f's_and_b32 s39, s{S_R}, 7')
    a('s_add_u32 s38, s37, 4')
    a(f's_mul_i32 s30, s37, {704*1024}')
    a('s_lshl_b32 s23, s39, 7')
    a('s_add_u32 s30, s30, s23')
    G.dma_w128(a, S_A, 1024, 30, 0, 704)
    VB = 16
    G.tr_bases_128(a, VB, 0, 2)
    flag_addr(a, G, G.F_DN, 8)
    a('v_lshlrev_b32 v9, 4, v0')
    a('v_and_b32 v2, 15, v0')
    a('v_min_u32 v2, 10, v2')
    a('s_mul_i32 s23, s37, 11')
    a('v_add_u32 v2, s23, v2')
    flag_addr(a, G, G.F_UP, 10, 2)
    a('s_waitcnt vmcnt(0)')
    a('s_barrier')
    G.stamp(a, 2)
    a(f's_mov_b32 s31, s{S_W}')
    a('s_mov_b32 s32, 0')
    a.label('DN_LOOP')
    a('s_add_u32 s34, s32, 1')
    G.wait_flags(a, 10, 0, 34)
    a(f's_mul_i32 s33, s31, {2*H_TSTRIDE}')
    a(f's_mul_i32 s34, s37, {22*1024}')
    a('s_add_u32 s33, s33, s34')
    a(f's_add_u32 s33, s33, {hex(G.WS_H)}')
    ACC = 64
    for nks, name in ((22, 'DN_A'), (21, 'DN_B')):
        if nks == 22:
            a('s_cmp_eq_u32 s37, 0')
            a('s_cbranch_scc0 DN_B')
        else:
            a.label('DN_B')
        a('s_mov_b32 s35, s33')
        for mt in range(2):
            if mt:
                a(f's_add_u32 s35, s33, {H_TSTRIDE}')
            for ks in range(nks):
                if ks % 4 == 0 and ks:
                    a('s_add_u32 s35, s35, 4096')
                b = mt * 88 + ks * 4
                a(f'buffer_load_dwordx4 a[{b}:{b+3}], v9, {WS}, s35 offen offset:{(ks%4)*1024}')
        a('s_waitcnt vmcnt(0)')
        frags = [[(VB + (4 if ks >= 16 else 0) + nt, (ks % 16) * 4096, 2048) for nt in range(4)] for ks in range(nks)]
        G.gemm_loop(a, nks, frags, 32, 4, G.Act(2, 'a', 0, 88),
                    lambda mt, nt: f'v[{ACC+16*mt+4*nt}:{ACC+16*mt+4*nt+3}]', w_is_A=True)
        if nks == 22:
            a('s_branch DN_EPI')
    a.label('DN_EPI')
    store_part(a, G, ACC)
    a('s_add_u32 s32, s32, 1')
    G.publish(a, 8, 32)
    a('s_add_u32 s31, s31, 4')
    a('s_cmp_lt_u32 s31, 64')
    a('s_cbranch_scc1 DN_LOOP')
    G.stamp(a, 3)
    G.dump_stamps(a)
    a('s_endpgm')


def role_out(a, opt, G):
    S_A, S_W, S_R = G.S_A, G.S_W, G.S_R
    WS = f's[{G.S_WS}:{G.S_WS+3}]'
    a.label('ROLE_OUT')
    G.srd(a, S_A, G.KA_WO, 4096 * 1024)
    a('s_waitcnt lgkmcnt(0)')
    a(f's_lshr_b32 s38, s{S_R}, 3')
    a(f's_and_b32 s39, s{S_R}, 7')
    a('s_lshl_b32 s30, s38, 20')
    a('s_lshl_b32 s23, s39, 7')
    a('s_add_u32 s30, s30, s23')
    G.dma_w128(a, S_A, 1024, 30, 0, 1024)
    VB = 16
    G.tr_bases_128(a, VB, 0, 2)
    flag_addr(a, G, G.F_OUT, 8)
    a('v_lshlrev_b32 v9, 4, v0')
    a('v_and_b32 v2, 7, v0')
    a('s_lshl_b32 s23, s38, 3')
    a('v_add_u32 v2, s23, v2')
    flag_addr(a, G, G.F_QA, 10, 2)
    a('s_waitcnt vmcnt(0)')
    a('s_barrier')
    G.stamp(a, 2)
    a(f's_mov_b32 s31, s{S_W}')
    a('s_mov_b32 s32, 0')
    a.label('OUT_LOOP')
    a('s_add_u32 s34, s32, 1')
    G.wait_flags(a, 10, 0, 34)
    G.stamp(a, 4)
    a('s_lshl_b32 s33, s31, 18')
    a('s_lshl_b32 s34, s38, 15')
    a('s_add_u32 s33, s33, s34')
    a(f's_add_u32 s33, s33, {hex(G.WS_O)}')
    for mt in range(2):
        a(f's_add_u32 s35, s33, {mt*0x20000}')
        for ks in range(32):
            if ks % 4 == 0 and ks:
                a('s_add_u32 s35, s35, 4096')
            b = mt * 128 + ks * 4
            a(f'buffer_load_dwordx4 a[{b}:{b+3}], v9, {WS}, s35 offen offset:{(ks%4)*1024}')
        if mt == 0:
            a('s_waitcnt vmcnt(24)')
    a('s_waitcnt vmcnt(0)')
    frags = [[(VB + (4 if ks >= 16 else 0) + nt, (ks % 16) * 4096, 2048) for nt in range(4)] for ks in range(32)]
    ACC = 64
    G.gemm_loop(a, 32, frags, 32, 4, G.Act(2, 'a', 0, 128),
                lambda mt, nt: f'v[{ACC+16*mt+4*nt}:{ACC+16*mt+4*nt+3}]', w_is_A=True)
    store_part(a, G, ACC)
    a('s_add_u32 s32, s32, 1')
    G.publish(a, 8, 32)
    a('s_add_u32 s31, s31, 4')
    a('s_cmp_lt_u32 s31, 64')
    a('s_cbranch_scc1 OUT_LOOP')
    G.stamp(a, 3)
    G.dump_stamps(a)
    a('s_endpgm')


def role_fin(a, opt, G):
    S_A, S_B, S_W, S_R = G.S_A, G.S_B, G.S_W, G.S_R
    WS = f's[{G.S_WS}:{G.S_WS+3}]'
    a.label('ROLE_FIN')
    G.srd(a, S_A, G.KA_X, 2048 * 1024)
    G.srd(a, S_B, G.KA_OUT, 2048 * 1024)
    a('s_waitcnt lgkmcnt(0)')
    a(f's_lshr_b32 s38, s{S_R}, 3')
    a(f's_and_b32 s39, s{S_R}, 7')
    a('v_lshlrev_b32 v9, 4, v0')
    a('v_and_b32 v2, 7, v0')
    a('v_min_u32 v2, 5, v2')
    a('v_and_b32 v4, 3, v2')
    a('v_lshlrev_b32 v4, 3, v4')
    a('v_add_u32 v4, s39, v4')
    a('v_lshlrev_b32 v4, 7, v4')
    a('v_lshrrev_b32 v5, 2, v2')
    a(f's_mov_b32 s23, {hex(G.F_DN - G.F_OUT)}')
    a('v_mul_lo_u32 v5, v5, s23')
    a('v_add_u32 v4, v4, v5')
    a(f's_lshl_b32 s23, s{S_W}, 2')
    a(f's_add_u32 s23, s23, {hex(G.F_OUT)}')
    a('v_add_u32 v10, s23, v4')
    a('v_and_b32 v2, 15, v0')
    a('v_lshlrev_b32 v2, 10, v2')
    a('v_lshrrev_b32 v3, 4, v0')
    a('v_lshl_add_u32 v11, v3, 3, v2')
    a('v_and_b32 v4, 1, v3')
    a('v_lshl_add_u32 v12, v4, 5, v2')
    a('v_lshrrev_b32 v4, 1, v3')
    a('v_lshl_add_u32 v12, v4, 4, v12')
    a(f's_mov_b32 s31, s{S_W}')
    a('s_mov_b32 s32, 0')
    a.label('FIN_LOOP')
    a('s_lshl_b32 s36, s31, 1')
    a('s_add_u32 s36, s36, s38')
    a('s_lshl_b32 s37, s36, 14')
    a('s_lshl_b32 s23, s39, 7')
    a('s_add_u32 s37, s37, s23')
    X = 16
    for nt in range(4):
        a(f'buffer_load_dwordx2 v[{X+2*nt}:{X+2*nt+1}], v11, s[{S_A}:{S_A+3}], s37 offen offset:{nt*32}')
    a('s_add_u32 s34, s32, 1')
    G.wait_flags(a, 10, 0, 34)
    G.stamp(a, 4)
    P = 32
    a('s_lshl_b32 s33, s36, 15')
    a('s_lshl_b32 s34, s39, 12')
    a('s_add_u32 s33, s33, s34')
    a(f's_add_u32 s33, s33, {hex(G.WS_PART)}')
    for sl in range(6):
        for nt in range(4):
            r = P + 16 * sl + 4 * nt
            a(f'buffer_load_dwordx4 v[{r}:{r+3}], v9, {WS}, s33 offen offset:{nt*1024}')
        if sl < 5:
            a('s_add_u32 s33, s33, 0x400000')
    a('s_waitcnt vmcnt(16)')
    for i in range(0, 16, 2):
        a(f'v_pk_add_f32 v[{P+i}:{P+i+1}], v[{P+i}:{P+i+1}], v[{P+16+i}:{P+16+i+1}]')
    a('s_waitcnt vmcnt(8)')
    for i in range(0, 16, 2):
        a(f'v_pk_add_f32 v[{P+32+i}:{P+32+i+1}], v[{P+32+i}:{P+32+i+1}], v[{P+48+i}:{P+48+i+1}]')
    for i in range(0, 16, 2):
        a(f'v_pk_add_f32 v[{P+i}:{P+i+1}], v[{P+i}:{P+i+1}], v[{P+32+i}:{P+32+i+1}]')
    a('s_waitcnt vmcnt(0)')
    for i in range(0, 16, 2):
        a(f'v_pk_add_f32 v[{P+64+i}:{P+64+i+1}], v[{P+64+i}:{P+64+i+1}], v[{P+80+i}:{P+80+i+1}]')
    OUTR = 24
    for i in range(0, 16, 2):
        A0, B0 = P + i, P + 64 + i
        a(f'v_cvt_pk_bf16_f32 v4, v{A0}, v{A0+1}')
        a(f'v_cvt_pk_bf16_f32 v5, v{B0}, v{B0+1}')
        a(f'v_lshlrev_b32 v{A0}, 16, v4')
        a(f'v_and_b32 v{A0+1}, 0xffff0000, v4')
        a(f'v_lshlrev_b32 v{B0}, 16, v5')
        a(f'v_and_b32 v{B0+1}, 0xffff0000, v5')
        a(f'v_lshlrev_b32 v6, 16, v{X+i//2}')
        a(f'v_and_b32 v7, 0xffff0000, v{X+i//2}')
        a(f'v_pk_add_f32 v[6:7], v[6:7], v[{A0}:{A0+1}]')
        a('v_cvt_pk_bf16_f32 v4, v6, v7')
        a('v_lshlrev_b32 v6, 16, v4')
        a('v_and_b32 v7, 0xffff0000, v4')
        a(f'v_pk_add_f32 v[6:7], v[6:7], v[{B0}:{B0+1}]')
        nt, hf = i // 4, (i // 2) & 1
        a(f'v_cvt_pk_bf16_f32 v{OUTR + 4*(nt>>1) + 2*(nt&1) + hf}, v6, v7')
    for p in range(2):
        for hf in range(2):
            a(f'v_permlane16_swap_b32 v{OUTR+4*p+hf}, v{OUTR+4*p+2+hf}')
    for p in range(2):
        a(f'buffer_store_dwordx4 v[{OUTR+4*p}:{OUTR+4*p+3}], v12, s[{S_B}:{S_B+3}], s37 offen offset:{p*64}')
    a('s_add_u32 s32, s32, 1')
    a('s_add_u32 s31, s31, 4')
    a('s_cmp_lt_u32 s31, 64')
    a('s_cbranch_scc1 FIN_LOOP')
    a('s_waitcnt vmcnt(0)')
    G.stamp(a, 3)
    G.dump_stamps(a)
    a('s_endpgm')


def role_spare(a, opt, G):
    S_D = G.S_D
    a.label('ROLE_SPARE')
    L, E = a.newlabel('SPL'), a.newlabel('SPE')
    a(f's_mov_b32 s23, {G.SPIN}')
    a('v_mov_b32 v2, 0')
    a.label(L)
    a(f'buffer_load_dwordx2 v[4:5], v2, s[{S_D}:{S_D+3}], 0 offen sc1')
    a('s_waitcnt vmcnt(0)')
    a('v_sad_u8 v6, v4, 0, 0')
    a('v_sad_u8 v6, v5, 0, v6')
    a('v_readfirstlane_b32 s28, v4')
    a('v_readfirstlane_b32 s29, v5')
    a('v_readfirstlane_b32 s27, v6')
    if opt.x0 < 8:
        a(f's_lshr_b64 s[24:25], s[28:29], {8*opt.x0}')
        a('s_and_b32 s24, s24, 0xff')
    else:
        a('s_mov_b32 s24, 0')
    a('s_cmp_ge_u32 s24, 32')
    a(f's_cbranch_scc1 {E}')
    a('s_cmp_ge_u32 s27, 256')
    a('s_cbranch_scc1 SP_DECIDE')
    a('s_sub_u32 s23, s23, 1')
    a(f's_cbranch_scc1 {E}')
    a('s_sleep 4')
    a(f's_branch {L}')
    a.label('SP_DECIDE')
    a(f's_add_u32 s{G.S_R}, s{G.S_R}, s24')
    a(f's_cmp_lt_u32 s{G.S_R}, 32')
    a('s_cbranch_scc1 ROLE_CHAIN')
    a.label(E)
    G.dump_stamps(a)
    a('s_endpgm')
```

```python
def load_xn(a, G):
    WS = f's[{G.S_WS}:{G.S_WS+3}]'
    a('s_lshl_b32 s33, s31, 15')
    a(f's_add_u32 s33, s33, {hex(G.WS_XN)}')
    for mt in range(2):
        for ks in range(16):
            if ks % 4 == 0 and (mt or ks):
                a('s_add_u32 s33, s33, 4096')
            b = mt * 64 + ks * 4
            a(f'buffer_load_dwordx4 a[{b}:{b+3}], v9, {WS}, s33 offen offset:{(ks%4)*1024}')


def role_qa(a, opt, G):
    S_A, S_W, S_R = G.S_A, G.S_W, G.S_R
    WS = f's[{G.S_WS}:{G.S_WS+3}]'
    a.label('ROLE_QA')
    G.srd(a, S_A, G.KA_WQ, 512 * 8192)
    a('s_waitcnt lgkmcnt(0)')
    a(f's_lshl_b32 s30, s{S_R}, 8')
    G.dma_w256(a, S_A, 8192, 30)
    VB = 16
    G.tr_bases_256(a, VB)
    a(f's_lshl_b32 s23, s{S_R}, 7')
    a(f's_lshl_b32 s24, s{S_W}, 2')
    a('s_add_u32 s24, s23, s24')
    a(f's_add_u32 s25, s24, {hex(G.F_QA)}')
    a('v_mov_b32 v8, s25')
    a('v_lshlrev_b32 v9, 4, v0')
    a('v_lshlrev_b32 v11, 3, v0')
    a('v_and_b32 v2, 1, v0')
    a('v_lshlrev_b32 v2, 12, v2')
    a(f's_add_u32 s25, s24, {hex(G.F_K)}')
    a('v_add_u32 v10, s25, v2')
    a(f's_add_u32 s25, s23, {hex(G.F_CH)}')
    a('v_mov_b32 v12, s25')
    a('v_lshrrev_b32 v2, 4, v0')
    a('v_lshlrev_b32 v2, 2, v2')
    a('v_and_b32 v3, 15, v0')
    for r in range(4):
        a(f'v_add_u32 v4, {r}, v2')
        a(f'v_cmp_le_u32 s[{64+2*r}:{65+2*r}], v4, v3')
    ONE, ONEL, NEG = 4, 14, 13
    a('v_cmp_gt_u32 vcc, 32, v0')
    a('v_mov_b32 v2, 0x3f803f80')
    a(f'v_mov_b32 v{ONEL}, 0')
    a(f'v_cndmask_b32 v{ONEL}, v{ONEL}, v2, vcc')
    a(f'v_mov_b32 v{ONEL+1}, v{ONEL}')
    for i in range(4):
        a(f'v_mov_b32 v{ONE+i}, 0x3f803f80')
    a(f'v_mov_b32 v{NEG}, 0xf149f2ca')
    a('s_mov_b32 s46, 0x3e0293ee')
    a('s_mov_b32 s47, 0x3e0293ee')
    a('s_waitcnt vmcnt(0)')
    a('s_barrier')
    G.stamp(a, 2)
    a(f's_mov_b32 s31, s{S_W}')
    a('s_mov_b32 s32, 0')
    a.label('QA_LOOP')
    G.wait_ln_segment(a, 31)
    load_xn(a, G)
    a('s_waitcnt vmcnt(0)')
    frags = [[(VB + (8 if ks >= 8 else 0) + nt, (ks % 8) * 8192, 4096) for nt in range(8)] for ks in range(16)]
    ACC = 64
    G.gemm_loop(a, 16, frags, 32, 4, G.Act(2, 'a', 0, 64),
                lambda mt, nt: f'v[{ACC+32*mt+4*nt}:{ACC+32*mt+4*nt+3}]', w_is_A=True)
    QF = 128
    for mt in range(2):
        for c in range(4):
            t0 = ACC + 32 * mt + 8 * c
            o = QF + 16 * mt + 4 * c
            for p in range(4):
                a(f'v_cvt_pk_bf16_f32 v{o+p}, v{t0+2*p}, v{t0+2*p+1}')
    a('s_add_u32 s34, s32, 1')
    G.wait_flags(a, 10, 0, 34)
    KS, KM, VS, VM = 160, 192, 208, 240
    a('s_lshl_b32 s35, s31, 18')
    a(f's_lshl_b32 s36, s{S_R}, 13')
    a('s_add_u32 s35, s35, s36')
    a(f's_add_u32 s36, s35, {hex(G.WS_K)}')
    for i in range(8):
        if i == 4:
            a('s_add_u32 s36, s36, 4096')
        a(f'buffer_load_dwordx4 v[{KS+4*i}:{KS+4*i+3}], v9, {WS}, s36 offen offset:{(i%4)*1024}')
    a(f's_add_u32 s36, s35, {hex(G.WS_V)}')
    for i in range(8):
        if i == 4:
            a('s_add_u32 s36, s36, 4096')
        a(f'buffer_load_dwordx4 v[{VS+4*i}:{VS+4*i+3}], v9, {WS}, s36 offen offset:{(i%4)*1024}')
    a('s_add_u32 s34, s31, 1')
    G.wait_flags(a, 12, 0, 34)
    G.stamp(a, 4)
    a('s_lshl_b32 s35, s31, 17')
    a(f's_lshl_b32 s36, s{S_R}, 12')
    a('s_add_u32 s35, s35, s36')
    a(f's_add_u32 s36, s35, {hex(G.WS_KM)}')
    for i in range(4):
        a(f'buffer_load_dwordx4 v[{KM+4*i}:{KM+4*i+3}], v9, {WS}, s36 offen offset:{i*1024}')
    a(f's_add_u32 s36, s35, {hex(G.WS_VM)}')
    for i in range(8):
        a(f'buffer_load_dwordx2 v[{VM+2*i}:{VM+2*i+1}], v11, {WS}, s36 offen offset:{i*512}')
    SM0, S00, SM1, S10, S11 = 64, 68, 72, 76, 80
    SUM0, SUM1 = 84, 88

    def chain4(d, A, B):
        for c in range(4):
            cin = '0' if c == 0 else f'v[{d}:{d+3}]'
            a(f'v_mfma_f32_16x16x32_bf16 v[{d}:{d+3}], v[{A+4*c}:{A+4*c+3}], v[{B+4*c}:{B+4*c+3}], {cin}')
    for c in range(4):
        for d, A, B in ((S00, KS, QF), (S10, KS, QF + 16), (S11, KS + 16, QF + 16)):
            cin = '0' if c == 0 else f'v[{d}:{d+3}]'
            a(f'v_mfma_f32_16x16x32_bf16 v[{d}:{d+3}], v[{A+4*c}:{A+4*c+3}], v[{B+4*c}:{B+4*c+3}], {cin}')
    a('s_waitcnt vmcnt(8)')
    for c in range(4):
        for d, B in ((SM0, QF), (SM1, QF + 16)):
            cin = '0' if c == 0 else f'v[{d}:{d+3}]'
            a(f'v_mfma_f32_16x16x32_bf16 v[{d}:{d+3}], v[{KM+4*c}:{KM+4*c+3}], v[{B+4*c}:{B+4*c+3}], {cin}')
    for d in (S00, S11):
        for r in range(4):
            a(f'v_cndmask_b32 v{d+r}, v{NEG}, v{d+r}, s[{64+2*r}:{65+2*r}]')
    sets = [([SM0 + i for i in range(4)] + [S00 + i for i in range(4)], 92, 93),
            ([SM1 + i for i in range(4)] + [S10 + i for i in range(8)], 94, 95)]
    for S, M0, M1 in sets:
        a(f'v_max3_f32 v{M0}, v{S[0]}, v{S[1]}, v{S[2]}')
        a(f'v_max3_f32 v{M1}, v{S[3]}, v{S[4]}, v{S[5]}')
        if len(S) == 8:
            a(f'v_max3_f32 v{M0}, v{M0}, v{S[6]}, v{S[7]}')
        else:
            a(f'v_max3_f32 v{M0}, v{M0}, v{S[6]}, v{S[7]}')
            a(f'v_max3_f32 v{M1}, v{M1}, v{S[8]}, v{S[9]}')
            a(f'v_max3_f32 v{M0}, v{M0}, v{S[10]}, v{S[11]}')
        a(f'v_max_f32 v{M0}, v{M0}, v{M1}')
    for sw in ('v_permlane32_swap_b32', 'v_permlane16_swap_b32'):
        for S, M0, M1 in sets:
            a(f'v_mov_b32 v{M1}, v{M0}')
        for S, M0, M1 in sets:
            a(f'{sw} v{M0}, v{M1}')
        for S, M0, M1 in sets:
            a(f'v_max_f32 v{M0}, v{M0}, v{M1}')
    for S, M0, M1 in sets:
        a(f'v_mul_f32 v{M0}, s46, v{M0}')
        a(f'v_sub_f32 v{M0}, 0, v{M0}')
    for S, M0, M1 in sets:
        for i in range(0, len(S), 2):
            a(f'v_pk_fma_f32 v[{S[i]}:{S[i]+1}], v[{S[i]}:{S[i]+1}], s[46:47], v[{M0}:{M0+1}] op_sel_hi:[1,1,0]')
    for S, M0, M1 in sets:
        for r in S:
            a(f'v_exp_f32 v{r}, v{r}')
    PS0, PM0, PS1, PM1 = 32, 36, 40, 44
    a(f'v_cvt_pk_bf16_f32 v{PS0}, v{S00}, v{S00+1}')
    a(f'v_cvt_pk_bf16_f32 v{PS0+1}, v{S00+2}, v{S00+3}')
    a(f'v_mov_b32 v{PS0+2}, 0')
    a(f'v_mov_b32 v{PS0+3}, 0')
    a(f'v_cvt_pk_bf16_f32 v{PM0}, v{SM0}, v{SM0+1}')
    a(f'v_cvt_pk_bf16_f32 v{PM0+1}, v{SM0+2}, v{SM0+3}')
    for p in range(4):
        a(f'v_cvt_pk_bf16_f32 v{PS1+p}, v{S10+2*p}, v{S10+2*p+1}')
    a(f'v_cvt_pk_bf16_f32 v{PM1}, v{SM1}, v{SM1+1}')
    a(f'v_cvt_pk_bf16_f32 v{PM1+1}, v{SM1+2}, v{SM1+3}')
    O = [96, 128]
    a('s_waitcnt vmcnt(0)')
    for tt, (PS, PM, SUM) in enumerate(((PS0, PM0, SUM0), (PS1, PM1, SUM1))):
        a(f'v_mfma_f32_16x16x32_bf16 v[{SUM}:{SUM+3}], v[{ONE}:{ONE+3}], v[{PS}:{PS+3}], 0')
        for et in range(8):
            d = O[tt] + 4 * et
            a(f'v_mfma_f32_16x16x32_bf16 v[{d}:{d+3}], v[{VS+4*et}:{VS+4*et+3}], v[{PS}:{PS+3}], 0')
        a(f'v_mfma_f32_16x16x16_bf16 v[{SUM}:{SUM+3}], v[{ONEL}:{ONEL+1}], v[{PM}:{PM+1}], v[{SUM}:{SUM+3}]')
        for et in range(8):
            d = O[tt] + 4 * et
            a(f'v_mfma_f32_16x16x16_bf16 v[{d}:{d+3}], v[{VM+2*et}:{VM+2*et+1}], v[{PM}:{PM+1}], v[{d}:{d+3}]')
    a('s_lshl_b32 s35, s31, 18')
    a(f's_lshl_b32 s36, s{S_R}, 12')
    a('s_add_u32 s35, s35, s36')
    a(f's_add_u32 s35, s35, {hex(G.WS_O)}')
    for tt, SUM in enumerate((SUM0, SUM1)):
        a(f'v_rcp_f32 v{SUM}, v{SUM}')
        for i in range(0, 32, 2):
            d = O[tt] + i
            a(f'v_pk_mul_f32 v[{d}:{d+1}], v[{d}:{d+1}], v[{SUM}:{SUM+1}] op_sel_hi:[1,0]')
        if tt == 1:
            a('s_add_u32 s35, s35, 0x20000')
        for c in range(4):
            t0 = O[tt] + 8 * c
            o = 48 + 4 * (c % 4)
            for p in range(4):
                a(f'v_cvt_pk_bf16_f32 v{o+p}, v{t0+2*p}, v{t0+2*p+1}')
            a(f'buffer_store_dwordx4 v[{o}:{o+3}], v9, {WS}, s35 offen offset:{c*1024} sc1')
    a('s_add_u32 s32, s32, 1')
    G.publish(a, 8, 32)
    a('s_add_u32 s31, s31, 4')
    a('s_cmp_lt_u32 s31, 64')
    a('s_cbranch_scc1 QA_LOOP')
    G.stamp(a, 3)
    G.dump_stamps(a)
    a('s_endpgm')
```

```python
def emit_all(a, opt, G):
    G.role_kv(a, 'K')
    G.role_kv(a, 'V')
    done = ['K', 'V']
    import importlib
    for name, mod in (('CHAIN', 'chain'), ('QA', 'qa'), ('UP', 'mlp'), ('DN', 'mlp'), ('OUT', 'mlp'), ('FIN', 'mlp')):
        try:
            m = importlib.import_module(mod)
            f = getattr(m, 'role_' + name.lower(), None)
        except ModuleNotFoundError:
            f = None
        if f is not None and (opt.roles == 'all' or name in opt.roles):
            f(a, opt, G)
        else:
            G.stub(a, name)
    import mlp
    mlp.role_spare(a, opt, G)
```

```python
import sys, os
sys.path.insert(0, os.path.dirname(os.path.abspath(__file__)))
from asmlib import Asm

KN = 'parallel_sum__memory_aug_recurrent_mem_tr__glu_gated_bilinear__prompt'

F_LN = 0x0000
F_K = 0x1000
F_V = 0x2000
F_CH = 0x3000
F_QA = 0x4000
F_UP = 0x6000
F_OUT = 0x7000
F_DN = 0x8000
F_RDY = 0x9000
F_END = 0xA000
WS_XN = 0x00100000
WS_K = 0x01000000
WS_V = 0x02000000
WS_O = 0x03000000
WS_H = 0x04000000
WS_PART = 0x05000000
WS_KM = 0x07000000
WS_VM = 0x07800000
WS_R1 = 0x08000000
WS_R2 = 0x08100000
WS_DBG = 0x09000000
WS_SIZE = 0x10000000

KA_X, KA_MEM0, KA_WQ, KA_WK, KA_WV, KA_WO = 0, 8, 16, 24, 32, 40
KA_WG, KA_WU, KA_WD, KA_OUT, KA_DBG, KA_WS = 64, 72, 80, 88, 96, 104

R_K0, R_V0, R_UP0, R_QA0, R_DN0, R_OUT0, R_FIN0, R_END = 0, 32, 64, 86, 118, 134, 166, 182

SPIN = 1 << 20

S_WS = 4
S_A = 8
S_B = 12
S_D = 16
S_W = 20
S_R = 21
S_ROLE = 22
S_T = 23


class Opt:
    prof = False
    x0 = 0
    roles = 'all'
    force_slow = False


def srd(a, sreg, ka_off, size):
    a(f's_load_dwordx2 s[{sreg}:{sreg+1}], s[0:1], {ka_off}')
    a(f's_mov_b32 s{sreg+2}, {hex(size)}')
    a(f's_mov_b32 s{sreg+3}, 0x20000')


def wave_allsum(a, regs, tmp):
    for sh in (8, 4, 2, 1):
        for r in regs:
            a(f'v_add_f32_dpp v{r}, v{r}, v{r} row_ror:{sh} row_mask:0xf bank_mask:0xf')
    for sw in ('v_permlane16_swap_b32', 'v_permlane32_swap_b32'):
        for r, t in zip(regs, tmp):
            a(f'v_mov_b32 v{t}, v{r}')
        for r, t in zip(regs, tmp):
            a(f'{sw} v{r}, v{t}')
        for r, t in zip(regs, tmp):
            a(f'v_add_f32 v{r}, v{r}, v{t}')


def bf16_round(a, dst, src, tmp=None):
    a(f'v_cvt_pk_bf16_f32 v{dst}, v{src}, v{src}')
    a(f'v_and_b32 v{dst}, 0xffff0000, v{dst}')


def spin_wait_dbg_init(a):
    L = a.newlabel('INITW')
    E = a.newlabel('INITE')
    a(f's_mov_b32 s{S_T}, {SPIN}')
    a('v_mov_b32 v2, 128')
    a.label(L)
    a(f'buffer_load_dword v3, v2, s[{S_D}:{S_D+3}], 0 offen sc1')
    a('s_waitcnt vmcnt(0)')
    a('v_readfirstlane_b32 s24, v3')
    a(f's_sub_u32 s{S_T}, s{S_T}, 1')
    a(f's_cbranch_scc1 {E}')
    a('s_cmp_eq_u32 s24, 0')
    a(f's_cbranch_scc0 {E}')
    a('s_sleep 2')
    a(f's_branch {L}')
    a.label(E)


PROF = [False]


def stamp(a, i):
    if PROF[0]:
        a('s_memrealtime s[98:99]')
        a('s_waitcnt lgkmcnt(0)')
        a(f's_mov_b32 s{80+i}, s98')


def dump_stamps(a):
    if PROF[0]:
        a('s_lshl_b32 s98, s2, 8')
        a(f's_lshl_b32 s99, s{S_W}, 6')
        a('s_add_u32 s98, s98, s99')
        a(f's_add_u32 s98, s98, {hex(WS_DBG)}')
        a('s_mov_b64 exec, 1')
        a('v_mov_b32 v250, 0')
        a(f's_mov_b32 s95, s{S_ROLE}')
        a(f's_mov_b32 s94, s{S_R}')
        a('s_mov_b32 s93, s26')
        for i in range(16):
            a(f'v_mov_b32 v251, s{80+i}')
            a(f'buffer_store_dword v251, v250, s[{S_WS}:{S_WS+3}], s98 offen offset:{4*i}')
        a('s_waitcnt vmcnt(0)')


def entry(a, opt):
    PROF[0] = opt.prof
    a('s_cmp_ge_u32 s2, 256')
    a('s_cbranch_scc1 EXIT')
    stamp(a, 0)
    if opt.prof:
        for i in range(1, 13):
            a(f's_mov_b32 s{80+i}, 0')
    srd(a, S_WS, KA_WS, WS_SIZE)
    srd(a, S_A, KA_X, 2048 * 512 * 2)
    srd(a, S_D, KA_DBG, 256)
    a('s_getreg_b32 s26, hwreg(HW_REG_XCC_ID,0,4)')
    a('s_and_b32 s26, s26, 7')
    a('v_lshrrev_b32 v1, 6, v0')
    a('v_and_b32 v0, 63, v0')
    a(f'v_readfirstlane_b32 s{S_W}, v1')
    a('s_waitcnt lgkmcnt(0)')
    a('s_lshl_b32 s23, s2, 3')
    a(f's_lshl_b32 s24, s{S_W}, 1')
    a('s_add_u32 s23, s23, s24')
    a('s_lshl_b32 s23, s23, 10')
    a('v_lshlrev_b32 v4, 4, v0')
    a(f'buffer_load_dwordx4 v[10:13], v4, s[{S_A}:{S_A+3}], s23 offen')
    a(f'buffer_load_dwordx4 v[14:17], v4, s[{S_A}:{S_A+3}], s23 offen offset:1024')
    a(f's_cmp_eq_u32 s{S_W}, 0')
    a('s_cbranch_scc0 NOTICKET')
    a('s_lshl_b32 s23, s26, 3')
    a('s_lshl_b64 s[24:25], 1, s23')
    a('s_mov_b64 s[28:29], exec')
    a('s_mov_b64 exec, 1')
    a('v_mov_b32 v2, s24')
    a('v_mov_b32 v3, s25')
    a('v_mov_b32 v5, 0')
    a(f'buffer_atomic_add_x2 v[2:3], v5, s[{S_D}:{S_D+3}], 0 offen sc0 sc1')
    a('s_mov_b64 exec, s[28:29]')
    a.label('NOTICKET')
    a('s_waitcnt vmcnt(1)')
    a('s_cmp_eq_u32 s20, 0')
    a('s_cbranch_scc1 LNGO')
    a('s_waitcnt vmcnt(0)')
    a.label('LNGO')
    rows = [(10, 20), (14, 28)]
    for src, d in rows:
        for i in range(4):
            a(f'v_lshlrev_b32 v{d+2*i}, 16, v{src+i}')
            a(f'v_and_b32 v{d+2*i+1}, 0xffff0000, v{src+i}')
    for (src, d), s in zip(rows, (36, 37)):
        a(f'v_add_f32 v{s}, v{d}, v{d+1}')
        for i in range(2, 8):
            a(f'v_add_f32 v{s}, v{s}, v{d+i}')
    wave_allsum(a, [36, 37], [38, 39])
    for s in (36, 37):
        a(f'v_mul_f32 v{s}, 0x3b000000, v{s}')
    for (src, d), s, q in zip(rows, (36, 37), (40, 41)):
        a(f'v_sub_f32 v42, v{d}, v{s}')
        a(f'v_mul_f32 v{q}, v42, v42')
        for i in range(1, 8):
            a(f'v_sub_f32 v42, v{d+i}, v{s}')
            a(f'v_fmac_f32 v{q}, v42, v42')
    wave_allsum(a, [40, 41], [38, 39])
    for (src, d), s, q in zip(rows, (36, 37), (40, 41)):
        a(f'v_mul_f32 v{q}, 0x3b000000, v{q}')
        bf16_round(a, q, q)
        a(f'v_add_f32 v{q}, 0x3727c5ac, v{q}')
        bf16_round(a, q, q)
        a(f'v_sqrt_f32 v{q}, v{q}')
        bf16_round(a, q, q)
        a(f'v_rcp_f32 v{q}, v{q}')
        bf16_round(a, s, s)
        for i in range(0, 8, 2):
            a(f'v_sub_f32 v{d+i}, v{d+i}, v{s}')
            a(f'v_sub_f32 v{d+i+1}, v{d+i+1}, v{s}')
            a(f'v_cvt_pk_bf16_f32 v42, v{d+i}, v{d+i+1}')
            a(f'v_lshlrev_b32 v{d+i}, 16, v42')
            a(f'v_and_b32 v{d+i+1}, 0xffff0000, v42')
            a(f'v_mul_f32 v{d+i}, v{d+i}, v{q}')
            a(f'v_mul_f32 v{d+i+1}, v{d+i+1}, v{q}')
            a(f'v_cvt_pk_bf16_f32 v{src+i//2}, v{d+i}, v{d+i+1}')
    a('v_lshrrev_b32 v5, 2, v0')
    a('v_lshlrev_b32 v5, 9, v5')
    a('v_and_b32 v6, 1, v0')
    a('v_lshl_add_u32 v5, v6, 8, v5')
    a('v_bfe_u32 v6, v0, 1, 1')
    a('v_lshl_add_u32 v5, v6, 3, v5')
    a(f's_lshl_b32 s23, s{S_W}, 5')
    a('v_add_u32 v5, s23, v5')
    a('ds_write_b64 v5, v[10:11] offset:0')
    a('ds_write_b64 v5, v[12:13] offset:128')
    a('ds_write_b64 v5, v[14:15] offset:16')
    a('ds_write_b64 v5, v[16:17] offset:144')
    a(f's_cmp_eq_u32 s{S_W}, 0')
    a('s_cbranch_scc0 NOTK2')
    a('s_waitcnt vmcnt(0)')
    a('v_mov_b32 v5, 8192')
    a('s_mov_b64 exec, 1')
    a('ds_write_b64 v5, v[2:3]')
    a('s_mov_b64 exec, s[28:29]')
    a.label('NOTK2')
    a('s_waitcnt lgkmcnt(0)')
    a('s_barrier')
    a(f's_lshl_b32 s23, s{S_W}, 6')
    a('v_add_u32 v6, s23, v0')
    a('v_lshlrev_b32 v5, 4, v6')
    a('ds_read_b128 v[10:13], v5')
    a('ds_read_b128 v[14:17], v5 offset:4096')
    a('v_mov_b32 v7, 8192')
    a('ds_read_b64 v[2:3], v7')
    a('v_lshrrev_b32 v7, 3, v6')
    a('v_lshlrev_b32 v7, 8, v7')
    a('v_and_b32 v8, 7, v6')
    a('v_lshl_add_u32 v7, v8, 4, v7')
    a('s_lshr_b32 s23, s2, 1')
    a('s_lshl_b32 s23, s23, 14')
    a('s_and_b32 s24, s2, 1')
    a('s_lshl_b32 s24, s24, 7')
    a('s_add_u32 s23, s23, s24')
    a(f's_add_u32 s23, s23, {hex(WS_XN)}')
    a('s_add_u32 s24, s23, 8192')
    a('s_waitcnt lgkmcnt(0)')
    a(f'buffer_store_dwordx4 v[10:13], v7, s[{S_WS}:{S_WS+3}], s23 offen sc1')
    a(f'buffer_store_dwordx4 v[14:17], v7, s[{S_WS}:{S_WS+3}], s24 offen sc1')
    a('v_readfirstlane_b32 s28, v2')
    a('v_readfirstlane_b32 s29, v3')
    a('v_sad_u8 v8, v2, 0, 0')
    a('v_sad_u8 v8, v3, 0, v8')
    a('s_lshl_b32 s23, s26, 3')
    a('s_lshr_b64 s[30:31], s[28:29], s23')
    a('s_and_b32 s30, s30, 0xff')
    a('v_readfirstlane_b32 s27, v8')
    x0 = opt.x0
    if x0 < 8:
        a(f's_lshr_b64 s[32:33], s[28:29], {8*x0}')
        a('s_and_b32 s32, s32, 0xff')
    else:
        a('s_mov_b32 s32, 0')
    a('s_min_u32 s32, s32, 32')
    a(f's_sub_u32 s{S_ROLE}, s27, s32')
    a('s_cmp_eq_u32 s27, 0')
    a('s_cbranch_scc0 NOCLR')
    a('v_mov_b32 v10, 0')
    a('v_mov_b32 v11, 0')
    a('v_mov_b32 v12, 0')
    a('v_mov_b32 v13, 0')
    a('v_lshlrev_b32 v5, 4, v6')
    for i in range(F_END // 4096):
        a(f's_mov_b32 s23, {i*4096}')
        a(f'buffer_store_dwordx4 v[10:13], v5, s[{S_WS}:{S_WS+3}], s23 offen sc1')
    a('s_waitcnt vmcnt(0)')
    a('s_barrier')
    a('v_mov_b32 v5, 128')
    a('v_mov_b32 v10, 1')
    a(f'buffer_store_dword v10, v5, s[{S_D}:{S_D+3}], 0 offen sc1')
    a.label('NOCLR')
    a('s_waitcnt vmcnt(0)')
    a('s_barrier')
    spin_wait_dbg_init(a)
    a(f's_cmp_eq_u32 s{S_W}, 0')
    a('s_cbranch_scc0 NOLNF')
    a('s_lshl_b32 s23, s2, 2')
    a('v_mov_b32 v5, s23')
    a('v_mov_b32 v10, 1')
    a(f'buffer_store_dword v10, v5, s[{S_WS}:{S_WS+3}], 0 offen sc1')
    a.label('NOLNF')
    stamp(a, 1)
    a(f's_cmp_eq_u32 s26, {x0}')
    a('s_cbranch_scc0 NOTCHAIN')
    a('s_cmp_lt_u32 s30, 32')
    a('s_cbranch_scc0 NOTCHAIN')
    a(f's_mov_b32 s{S_R}, s30')
    a('s_branch ROLE_CHAIN')
    a.label('NOTCHAIN')
    for name, lo, hi in (('K', R_K0, R_V0), ('V', R_V0, R_UP0), ('UP', R_UP0, R_QA0), ('QA', R_QA0, R_DN0),
                         ('DN', R_DN0, R_OUT0), ('OUT', R_OUT0, R_FIN0), ('FIN', R_FIN0, R_END)):
        a(f's_sub_u32 s{S_R}, s{S_ROLE}, {lo}')
        a(f's_cmp_lt_u32 s{S_ROLE}, {hi}')
        a(f's_cbranch_scc1 ROLE_{name}')
    a(f's_sub_u32 s{S_R}, s{S_ROLE}, {R_END}')
    a('s_branch ROLE_SPARE')


def dma_w256(a, srdreg, rowstride, colbase_sgpr, nrows=512):
    a('v_lshrrev_b32 v2, 4, v0')
    a(f's_and_b32 s23, s{S_W}, 1')
    a('s_lshl_b32 s23, s23, 2')
    a('v_add_u32 v3, s23, v2')
    a('v_lshlrev_b32 v3, 1, v3')
    a('v_and_b32 v4, 15, v0')
    a('v_xor_b32 v4, v4, v3')
    a('v_lshlrev_b32 v4, 4, v4')
    a(f's_mov_b32 s23, {rowstride}')
    a('v_mul_lo_u32 v2, v2, s23')
    a('v_add_u32 v2, v2, v4')
    a(f's_mul_i32 s24, s{S_W}, {4*rowstride}')
    a(f's_add_u32 s24, s24, s{colbase_sgpr}')
    a(f's_lshl_b32 s25, s{S_W}, 10')
    L = a.newlabel('DMA')
    a(f's_mov_b32 s27, {nrows//16}')
    a.label(L)
    a('s_mov_b32 m0, s25')
    a('s_add_u32 s25, s25, 4096')
    a(f'buffer_load_dwordx4 v2, s[{srdreg}:{srdreg+3}], s24 offen lds')
    a(f's_add_u32 s24, s24, {16*rowstride}')
    a('s_sub_u32 s27, s27, 1')
    a('s_cmp_lg_u32 s27, 0')
    a(f's_cbranch_scc1 {L}')


def dma_w128(a, srdreg, rowstride, colbase_sgpr, ldsbase, nrows):
    a('v_lshrrev_b32 v2, 3, v0')
    a('v_bfe_u32 v3, v0, 4, 2')
    a('v_bfe_u32 v4, v0, 1, 2')
    a('v_xor_b32 v4, v4, v3')
    a('v_lshlrev_b32 v4, 5, v4')
    a('v_and_b32 v3, 1, v0')
    a('v_lshl_add_u32 v4, v3, 4, v4')
    a(f's_mov_b32 s23, {rowstride}')
    a('v_mul_lo_u32 v2, v2, s23')
    a('v_add_u32 v2, v2, v4')
    a(f's_mul_i32 s24, s{S_W}, {8*rowstride}')
    a(f's_add_u32 s24, s24, s{colbase_sgpr}')
    a(f's_lshl_b32 s25, s{S_W}, 10')
    a(f's_add_u32 s25, s25, {ldsbase}')
    L = a.newlabel('DMA')
    a(f's_mov_b32 s27, {nrows//32}')
    a.label(L)
    a('s_mov_b32 m0, s25')
    a('s_add_u32 s25, s25, 4096')
    a(f'buffer_load_dwordx4 v2, s[{srdreg}:{srdreg+3}], s24 offen lds')
    a(f's_add_u32 s24, s24, {32*rowstride}')
    a('s_sub_u32 s27, s27, 1')
    a('s_cmp_lg_u32 s27, 0')
    a(f's_cbranch_scc1 {L}')


def tr_bases_256(a, vb, nsets=2):
    a('v_bfe_u32 v2, v0, 2, 2')
    a('v_lshrrev_b32 v3, 4, v0')
    a('v_lshl_add_u32 v4, v3, 2, v2')
    a('v_lshlrev_b32 v5, 8, v4')
    a('v_and_b32 v4, 7, v4')
    a('v_lshlrev_b32 v4, 1, v4')
    a('v_and_b32 v6, 1, v0')
    a('v_lshl_add_u32 v5, v6, 3, v5')
    a('v_bfe_u32 v6, v0, 1, 1')
    for nt in range(8):
        a(f'v_add_u32 v7, {2*nt}, v6')
        a('v_xor_b32 v7, v7, v4')
        a(f'v_lshl_add_u32 v{vb+nt}, v7, 4, v5')
        if nsets > 1:
            a(f'v_add_u32 v{vb+8+nt}, 0x10000, v{vb+nt}')


def tr_bases_128(a, vb, ldsbase, nsets):
    a('v_bfe_u32 v2, v0, 2, 2')
    a('v_lshrrev_b32 v3, 4, v0')
    a('v_lshl_add_u32 v4, v3, 2, v2')
    a('v_lshlrev_b32 v5, 7, v4')
    a('v_bfe_u32 v4, v4, 1, 2')
    a('v_and_b32 v6, 3, v0')
    a('v_lshl_add_u32 v5, v6, 3, v5')
    if ldsbase:
        a(f'v_add_u32 v5, {ldsbase}, v5')
    for nt in range(4):
        a(f'v_xor_b32 v7, {nt}, v4')
        a(f'v_lshl_add_u32 v{vb+nt}, v7, 5, v5')
        for s in range(1, nsets):
            a(f'v_add_u32 v{vb+4*s+nt}, {hex(0x10000*s)}, v{vb+nt}')


def reg(kind, i, n=1):
    return f'{kind}{i}' if n == 1 else f'{kind}[{i}:{i+n-1}]'


def gemm_loop(a, KS, frags, ring, ring_n, act, acc, w_is_A, depth=3):
    seq = [(ks, nt) for ks in range(KS) for nt in range(len(frags[0]))]
    MT = act.MT

    def issue(idx):
        ks, nt = seq[idx]
        vaddr, off, histep = frags[ks][nt]
        b = ring + 4 * (idx % ring_n)
        a(f'ds_read_b64_tr_b16 v[{b}:{b+1}], v{vaddr} offset:{off}')
        a(f'ds_read_b64_tr_b16 v[{b+2}:{b+3}], v{vaddr} offset:{off+histep}')
    for i in range(min(depth, len(seq))):
        issue(i)
    for idx, (ks, nt) in enumerate(seq):
        rem = min(depth - 1, len(seq) - 1 - idx)
        a(f's_waitcnt lgkmcnt({2*rem})')
        b = ring + 4 * (idx % ring_n)
        w = f'v[{b}:{b+3}]'
        for mt in range(MT):
            c = acc(mt, nt)
            cin = '0' if ks == 0 else c
            if w_is_A:
                a(f'v_mfma_f32_16x16x32_bf16 {c}, {w}, {act(mt, ks)}, {cin}')
            else:
                a(f'v_mfma_f32_16x16x32_bf16 {c}, {act(mt, ks)}, {w}, {cin}')
        if idx + depth < len(seq):
            issue(idx + depth)


class Act:
    def __init__(self, MT, kind, base, per):
        self.MT, self.kind, self.base, self.per = MT, kind, base, per

    def __call__(self, mt, ks):
        b = self.base + mt * self.per + 4 * ks
        return f'{self.kind}[{b}:{b+3}]'


def wait_ln_segment(a, seg_sgpr):
    L = a.newlabel('WLN')
    E = a.newlabel('WLNE')
    a('v_and_b32 v2, 3, v0')
    a('v_lshlrev_b32 v2, 2, v2')
    a(f's_lshl_b32 s23, s{seg_sgpr}, 4')
    a(f's_mov_b32 s24, {SPIN}')
    a.label(L)
    a(f'buffer_load_dword v3, v2, s[{S_WS}:{S_WS+3}], s23 offen sc1')
    a('s_waitcnt vmcnt(0)')
    a('v_cmp_eq_u32 vcc, 0, v3')
    a('s_sub_u32 s24, s24, 1')
    a(f's_cbranch_scc1 {E}')
    a(f's_cbranch_vccz {E}')
    a('s_sleep 1')
    a(f's_branch {L}')
    a.label(E)


def wait_flags(a, voff, soff_sgpr_or_imm, need_sgpr):
    L = a.newlabel('WF')
    E = a.newlabel('WFE')
    a(f's_mov_b32 s24, {SPIN}')
    a.label(L)
    a(f'buffer_load_dword v3, v{voff}, s[{S_WS}:{S_WS+3}], {soff_sgpr_or_imm} offen sc1')
    a('s_waitcnt vmcnt(0)')
    a(f'v_cmp_gt_u32 vcc, s{need_sgpr}, v3')
    a('s_sub_u32 s24, s24, 1')
    a(f's_cbranch_scc1 {E}')
    a(f's_cbranch_vccz {E}')
    a('s_sleep 1')
    a(f's_branch {L}')
    a.label(E)


def publish(a, flag_voff, val_sgpr):
    a('s_waitcnt vmcnt(0)')
    a(f'v_mov_b32 v3, s{val_sgpr}')
    a('s_mov_b64 exec, 1')
    a(f'buffer_store_dword v3, v{flag_voff}, s[{S_WS}:{S_WS+3}], 0 offen sc1')
    a('s_mov_b64 exec, -1')


def role_kv(a, which):
    isK = which == 'K'
    a.label(f'ROLE_{which}')
    srd(a, S_A, KA_WK if isK else KA_WV, 512 * 8192)
    a('s_waitcnt lgkmcnt(0)')
    a(f's_lshl_b32 s30, s{S_R}, 8')
    dma_w256(a, S_A, 8192, 30)
    VB = 16
    tr_bases_256(a, VB)
    a(f's_lshl_b32 s23, s{S_R}, 7')
    a(f's_lshl_b32 s24, s{S_W}, 2')
    a('s_add_u32 s23, s23, s24')
    a(f's_add_u32 s23, s23, {hex(F_K if isK else F_V)}')
    a('v_mov_b32 v8, s23')
    a('v_lshlrev_b32 v9, 4, v0')
    a('s_waitcnt vmcnt(0)')
    a('s_barrier')
    stamp(a, 2)
    a(f's_mov_b32 s31, s{S_W}')
    a('s_mov_b32 s32, 0')
    LOOP = f'{which}_LOOP'
    a.label(LOOP)
    wait_ln_segment(a, 31)
    a('s_lshl_b32 s33, s31, 15')
    a(f's_add_u32 s33, s33, {hex(WS_XN)}')
    for mt in range(2):
        for ks in range(16):
            if ks % 4 == 0 and (mt or ks):
                a('s_add_u32 s33, s33, 4096')
            b = mt * 64 + ks * 4
            a(f'buffer_load_dwordx4 a[{b}:{b+3}], v9, s[{S_WS}:{S_WS+3}], s33 offen offset:{(ks%4)*1024}')
    a('s_waitcnt vmcnt(0)')
    frags = [[(VB + (8 if ks >= 8 else 0) + nt, (ks % 8) * 8192, 4096) for nt in range(8)] for ks in range(16)]
    ACC = 64
    gemm_loop(a, 16, frags, 32, 4, Act(2, 'a', 0, 64), lambda mt, nt: f'v[{ACC+32*mt+4*nt}:{ACC+32*mt+4*nt+3}]', w_is_A=isK)
    a(f's_lshl_b32 s33, s31, 18')
    a(f's_lshl_b32 s34, s{S_R}, 13')
    a('s_add_u32 s33, s33, s34')
    a(f's_add_u32 s33, s33, {hex(WS_K if isK else WS_V)}')
    if isK:
        for mt in range(2):
            for c in range(4):
                t0 = ACC + 32 * mt + 8 * c
                o = 40 + 4 * ((mt * 4 + c) % 4)
                a(f'v_cvt_pk_bf16_f32 v{o}, v{t0}, v{t0+1}')
                a(f'v_cvt_pk_bf16_f32 v{o+1}, v{t0+2}, v{t0+3}')
                a(f'v_cvt_pk_bf16_f32 v{o+2}, v{t0+4}, v{t0+5}')
                a(f'v_cvt_pk_bf16_f32 v{o+3}, v{t0+6}, v{t0+7}')
                if mt == 1 and c == 0:
                    a('s_add_u32 s33, s33, 4096')
                a(f'buffer_store_dwordx4 v[{o}:{o+3}], v9, s[{S_WS}:{S_WS+3}], s33 offen offset:{c*1024} sc1')
    else:
        for et in range(8):
            t0 = ACC + 4 * et
            t1 = ACC + 32 + 4 * et
            o = 40 + 4 * (et % 4)
            a(f'v_cvt_pk_bf16_f32 v{o}, v{t0}, v{t0+1}')
            a(f'v_cvt_pk_bf16_f32 v{o+1}, v{t0+2}, v{t0+3}')
            a(f'v_cvt_pk_bf16_f32 v{o+2}, v{t1}, v{t1+1}')
            a(f'v_cvt_pk_bf16_f32 v{o+3}, v{t1+2}, v{t1+3}')
            if et == 4:
                a('s_add_u32 s33, s33, 4096')
            a(f'buffer_store_dwordx4 v[{o}:{o+3}], v9, s[{S_WS}:{S_WS+3}], s33 offen offset:{(et%4)*1024} sc1')
    a('s_add_u32 s32, s32, 1')
    publish(a, 8, 32)
    a('s_add_u32 s31, s31, 4')
    a('s_cmp_lt_u32 s31, 64')
    a(f's_cbranch_scc1 {LOOP}')
    stamp(a, 3)
    dump_stamps(a)
    a('s_endpgm')


def stub(a, name):
    a.label(f'ROLE_{name}')
    dump_stamps(a)
    a('s_endpgm')


def build(opt):
    a = Asm()
    entry(a, opt)
    import roles
    roles.emit_all(a, opt, sys.modules[__name__])
    a.label('EXIT')
    a('s_endpgm')
    body = a.finalize()
    hdr = open('cdna_kernels/' + KN + '.s.ref').read().split('\n')
    pre = []
    for l in hdr:
        if l.startswith('; @launch'):
            pre.append('; @launch grid=(256,1,1) block=(256,1,1) lds=163840')
            continue
        if l.startswith(KN + '_kernel:'):
            pre.append(l)
            break
        pre.append(l)
    post = f'''
.section .rodata,"a"
.p2align 6
.amdhsa_kernel {KN}_kernel
  .amdhsa_next_free_vgpr 512
  .amdhsa_next_free_sgpr 102
  .amdhsa_accum_offset 256
  .amdhsa_group_segment_fixed_size 0
  .amdhsa_kernarg_size 112
  .amdhsa_user_sgpr_count 2
  .amdhsa_user_sgpr_kernarg_segment_ptr 1
  .amdhsa_system_sgpr_workgroup_id_x 1
.end_amdhsa_kernel
'''
    return '\n'.join(pre) + '\n' + body + '\n' + post, a


if __name__ == '__main__':
    opt = Opt()
    out = sys.argv[1] if len(sys.argv) > 1 else 'cdna_kernels/' + KN + '.s'
    for kv in sys.argv[2:]:
        k, v = kv.split('=')
        setattr(opt, k, eval(v))
    txt, a = build(opt)
    open(out, 'w').write(txt)
    print('written', out, len(txt), 'bytes; nops inserted', a.nops_inserted)
```
